```python
import torch

def _softmax(x, axis=-1):
    return torch.softmax(x, dim=axis)
def _gelu(x):
    return torch.nn.functional.gelu(x, approximate="tanh")
def _silu(x):
    return torch.nn.functional.silu(x)
def _sigmoid(x):
    return torch.sigmoid(x)
def _layernorm(x, axis=-1, eps=1e-5):
    m = x.mean(dim=axis, keepdim=True)
    v = x.var(dim=axis, keepdim=True, unbiased=False)
    return (x - m) / torch.sqrt(v + eps)
def _scatter_add(tgt, idx, src, axis=0):
    return tgt.clone().index_add_(axis, idx, src)
def _segment_sum(src, seg, n):
    out = torch.zeros((n,) + src.shape[1:], dtype=src.dtype)
    return out.index_add_(0, seg, src)
def _pad(x, pw):
    flat = tuple(v for pair in reversed(pw) for v in pair)
    return torch.nn.functional.pad(x, flat)

kernel_name = 'sequential_preLN__grouped_kv_mqa__glu_gated_swiglu__prompt'

def setup_inputs():

    _w = (lambda a: (lambda t: t.to(torch.bfloat16) if t.is_floating_point() else t)(torch.as_tensor(a)))
    def _A_setup():
        B, S, D, H = 1, 2048, 640, 32
        Dh = D // H
        return {
            "x": _w((lambda *s: torch.randn(*s, dtype=torch.bfloat16) * 0.05)(B, S, D)),
            "wq": _w((lambda *s: torch.randn(*s, dtype=torch.bfloat16) * 0.05)(D, H * Dh)),
            "wk": _w((lambda *s: torch.randn(*s, dtype=torch.bfloat16) * 0.05)(D, Dh)),
            "wv": _w((lambda *s: torch.randn(*s, dtype=torch.bfloat16) * 0.05)(D, Dh)),
            "wo": _w((lambda *s: torch.randn(*s, dtype=torch.bfloat16) * 0.05)(H * Dh, D)),
        }
    _A_in = _A_setup()

    def _B_setup():
        B, S, D, F = 1, 2048, 640, 1536
        return {
            "x": _w((lambda *s: torch.randn(*s, dtype=torch.bfloat16) * 0.05)(B, S, D)),
            "w1": _w((lambda *s: torch.randn(*s, dtype=torch.bfloat16) * 0.4)(D, F) * (2.0 / D) ** 0.5),
            "w3": _w((lambda *s: torch.randn(*s, dtype=torch.bfloat16) * 0.4)(D, F) * (2.0 / D) ** 0.5),
            "w2": _w((lambda *s: torch.randn(*s, dtype=torch.bfloat16) * 0.4)(F, D) * (2.0 / F) ** 0.5),
        }
    _B_in = _B_setup()

    return {
        "A_x": _A_in["x"],
        "A_wq": _A_in["wq"],
        "A_wk": _A_in["wk"],
        "A_wv": _A_in["wv"],
        "A_wo": _A_in["wo"],
        "B_x": _B_in["x"],
        "B_w1": _B_in["w1"],
        "B_w3": _B_in["w3"],
        "B_w2": _B_in["w2"],
    }

def reference(A_x, A_wq, A_wk, A_wv, A_wo, B_x, B_w1, B_w3, B_w2):
    def _A_ref(x, wq, wk, wv, wo):
        B, S, D = x.shape
        H = 32
        Dh = D // H
        q = (lambda x, *d: x.permute(*d))((x @ wq).reshape(B, S, H, Dh), 0, 2, 1, 3)
        k = x @ wk
        v = x @ wv
        scores = torch.einsum("bhqd,bkd->bhqk", q, k) * (Dh ** -0.5)
        p = _softmax(scores, axis=-1)
        o = torch.einsum("bhqk,bkd->bhqd", p, v)
        return (lambda x, *d: x.permute(*d))(o, 0, 2, 1, 3).reshape(B, S, H * Dh) @ wo

    def _B_ref(x, w1, w3, w2):
        gate = torch.einsum("bsd,df->bsf", x, w1)
        up = torch.einsum("bsd,df->bsf", x, w3)
        h = _silu(gate) * up
        out = torch.einsum("bsf,fd->bsd", h, w2)
        return out

    x = A_x
    h = x + _A_ref(_layernorm(x, axis=-1), A_wq, A_wk, A_wv, A_wo)
    h2 = h + _B_ref(_layernorm(h, axis=-1), B_w1, B_w3, B_w2)
    return h2
```

```python
import math, struct
from dsl import *

NAME = "sequential_preLN__grouped_kv_mqa__glu_gated_swiglu__prompt"

def f2u(x): return struct.unpack('<I', struct.pack('<f', x))[0]
def fhex(x): return hex(f2u(x))

WS_KV = 0x000000
WS_Q  = 0x100000
WS_O  = 0x400000
WS_H  = 0x700000
WS_ST = 0xA00000
WS_G  = 0xB00000
WS_FL = 0x1200000
WS_SIZE = 0x1400000
KVT = 3584
OOB = 0x40000000

S_X, S_WQ, S_WKV, S_WO, S_W1, S_W3, S_W2, S_OUT, S_WS, S_DBG = 28, 32, 36, 40, 44, 48, 52, 56, 60, 64
sW, sG, sI, sJ, sRB, sC = 's68', 's69', 's70', 's71', 's72', 's73'
sSELLO, sSELHI, sONES = 's74', 's75', 's76'
sT = ['s%d' % i for i in range(78, 100)]

QSCALE = math.log2(math.e) / math.sqrt(20.0)
EPS = 1e-5

def srd(p, dst, lo, size):
    p(f's_mov_b32 s{dst}, s{lo}')
    p(f's_and_b32 s{dst+1}, s{lo+1}, 0xffff')
    p(f's_mov_b32 s{dst+2}, {size}')
    p(f's_mov_b32 s{dst+3}, 0x20000')

def prologue(p, exit_label):
    p(f's_cmp_ge_u32 s2, 256')
    p(f's_cbranch_scc1 {exit_label}')
    p('s_load_dwordx16 s[4:19], s[0:1], 0')
    p('s_load_dwordx8 s[20:27], s[0:1], 64')
    p('v_lshrrev_b32 v4, 6, v0')
    p('v_and_b32 v1, 63, v0')
    p(f'v_readfirstlane_b32 {sW}, v4')
    p('v_and_b32 v2, 15, v1')
    p('v_lshrrev_b32 v3, 4, v1')
    p(f's_and_b32 {sT[0]}, s2, 7')
    p(f's_lshr_b32 {sT[1]}, s2, 3')
    p(f's_lshr_b32 {sT[2]}, {sT[1]}, 4')
    p(f's_lshl_b32 {sG}, {sT[0]}, 1')
    p(f's_add_u32 {sG}, {sG}, {sT[2]}')
    p(f's_and_b32 {sC}, {sT[1]}, 15')
    p(f's_lshr_b32 {sI}, {sC}, 3')
    p(f's_and_b32 {sJ}, {sC}, 7')
    p(f's_lshl_b32 {sRB}, {sG}, 1')
    p(f's_add_u32 {sRB}, {sRB}, {sI}')
    p(f's_mov_b32 {sSELLO}, 0x00003f80')
    p(f's_mov_b32 {sSELHI}, 0x3f800000')
    p(f's_mov_b32 {sONES}, 0x3f803f80')
    p('s_waitcnt lgkmcnt(0)')
    srd(p, S_X, 4, 2048 * 1280)
    srd(p, S_WQ, 6, 640 * 1280)
    p(f's_bitcmp1_b32 {sJ}, 0')
    p(f's_cselect_b32 s{S_WKV}, s10, s8')
    p(f's_cselect_b32 s{S_WKV+1}, s11, s9')
    p(f's_and_b32 s{S_WKV+1}, s{S_WKV+1}, 0xffff')
    p(f's_mov_b32 s{S_WKV+2}, {640 * 40}')
    p(f's_mov_b32 s{S_WKV+3}, 0x20000')
    srd(p, S_WO, 12, 640 * 1280)
    srd(p, S_W1, 16, 640 * 3072)
    srd(p, S_W3, 18, 640 * 3072)
    srd(p, S_W2, 20, 1536 * 1280)
    srd(p, S_OUT, 22, 2048 * 1280)
    srd(p, S_WS, 26, WS_SIZE)
    srd(p, S_DBG, 24, 256)

def w80_addrs(p, va, vtr, tmp):
    t0, t1, t2 = tmp
    p(f's_mul_i32 {sT[0]}, {sJ}, 160')
    for q in range(5):
        p(f'v_add_u32 {t0}, {64*q}, v1')
        p(f'v_mul_u32_u24 {t1}, 0xcd, {t0}')
        p(f'v_lshrrev_b32 {t1}, 11, {t1}')
        p(f'v_mul_u32_u24 {t2}, 10, {t1}')
        p(f'v_sub_u32 {t0}, {t0}, {t2}')
        p(f'v_lshlrev_b32 {t0}, 4, {t0}')
        p(f'v_lshrrev_b32 {t2}, 2, {t1}')
        p(f'v_lshrrev_b32 {va[q]}, 3, {t1}')
        p(f'v_xor_b32 {t2}, {t2}, {va[q]}')
        p(f'v_and_b32 {t2}, 1, {t2}')
        p(f'v_mul_u32_u24 {t2}, 12, {t2}')
        p(f'v_xor_b32 {t1}, {t1}, {t2}')
        p(f'v_mul_u32_u24 {t1}, 1280, {t1}')
        p(f'v_add3_u32 {va[q]}, {t0}, {t1}, {sT[0]}')
    p(f'v_lshrrev_b32 {t0}, 1, v3')
    p(f'v_lshlrev_b32 {t0}, 4, {t0}')
    p(f'v_and_b32 {t1}, 1, v3')
    p(f'v_lshl_add_u32 {t0}, {t1}, 2, {t0}')
    p(f'v_lshrrev_b32 {t1}, 2, v2')
    p(f'v_add_u32 {t0}, {t0}, {t1}')
    p(f'v_mul_u32_u24 {t0}, 160, {t0}')
    p(f'v_and_b32 {t1}, 3, v2')
    p(f'v_lshl_add_u32 {vtr}, {t1}, 3, {t0}')

def allreduce_g(regs, tmps):
    out = []
    for op in ('v_permlane32_swap_b32', 'v_permlane16_swap_b32'):
        for r, t in zip(regs, tmps): out.append(I(f'v_mov_b32 {t}, {r}'))
        for r, t in zip(regs, tmps): out.append(I(f'{op} {t}, {r}'))
        for r, t in zip(regs, tmps): out.append(I(f'v_add_f32 {r}, {r}, {t}'))
    return out

def ln_from_sums(sm, sq, mean, rstd, t):
    return [I(f'v_mul_f32 {mean}, {fhex(1/640)}, {sm}'),
            I(f'v_mul_f32 {t}, {mean}, {mean}'),
            I(f'v_mov_b32 {rstd}, {fhex(1/640)}'),
            I(f'v_fma_f32 {t}, {sq}, {rstd}, -{t}'),
            I(f'v_max_f32 {t}, 0, {t}'),
            I(f'v_add_f32 {t}, {fhex(EPS)}, {t}'),
            I(f'v_rsq_f32 {rstd}, {t}')]

def dma(voff, srd_, soff, ldsaddr, tag):
    out = []
    if isinstance(ldsaddr, int): out.append(I(f's_mov_b32 m0, {ldsaddr}'))
    else: out.append(I(f's_add_u32 m0, {ldsaddr[0]}, {ldsaddr[1]}'))
    out.append(I(f'buffer_load_dwordx4 {voff}, s[{srd_}:{srd_+3}], {soff} offen lds', tag))
    return out

def kernel_text(name, prog, vgpr, accum):
    body, ins = finalize(prog)
    txt = f""".globl {name}
.p2align 8
.type {name},@function
{name}:
{body}"""
    kd = f""".amdhsa_kernel {name}
  .amdhsa_next_free_vgpr {vgpr}
  .amdhsa_next_free_sgpr 102
  .amdhsa_accum_offset {accum}
  .amdhsa_group_segment_fixed_size 0
  .amdhsa_kernarg_size 96
  .amdhsa_user_sgpr_count 2
  .amdhsa_user_sgpr_kernarg_segment_ptr 1
  .amdhsa_system_sgpr_workgroup_id_x 1
.end_amdhsa_kernel
"""
    return txt, kd, ins

HEADER = """; Kernarg layout (96 bytes, pointers only, base s[0:1]):
"""
```

```python
import re

REG_RE = re.compile(r'^(-?)(?:abs\()?([vas])(\d+)\)?$')
RANGE_RE = re.compile(r'^(-?)([vas])\[(\d+):(\d+)\]$')

def regs_of(tok):
    tok = tok.strip()
    m = REG_RE.match(tok)
    if m: return [(m.group(2), int(m.group(3)))]
    m = RANGE_RE.match(tok)
    if m: return [(m.group(2), i) for i in range(int(m.group(3)), int(m.group(4)) + 1)]
    if tok == 'vcc': return [('s', 106), ('s', 107)]
    if tok == 'vcc_lo': return [('s', 106)]
    if tok == 'vcc_hi': return [('s', 107)]
    if tok == 'exec': return [('s', 126), ('s', 127)]
    if tok == 'exec_lo': return [('s', 126)]
    if tok == 'exec_hi': return [('s', 127)]
    if tok == 'm0': return [('s', 124)]
    return []

def v(i, n=1): return f"v{i}" if n == 1 else f"v[{i}:{i+n-1}]"
def a(i, n=1): return f"a{i}" if n == 1 else f"a[{i}:{i+n-1}]"
def s(i, n=1): return f"s{i}" if n == 1 else f"s[{i}:{i+n-1}]"

TRANS = ('v_exp_f32', 'v_log_f32', 'v_rcp_f32', 'v_rsq_f32', 'v_sqrt_f32', 'v_sin_f32', 'v_cos_f32')
PASSES = {'v_mfma_f32_32x32x16_bf16': 8, 'v_mfma_f32_32x32x8_bf16': 8, 'v_smfmac_f32_32x32x32_bf16': 8,
          'v_mfma_f32_16x16x32_bf16': 4, 'v_mfma_f32_16x16x16_bf16': 4}

class Ins:
    __slots__ = ('text', 'op', 'kind', 'w', 'r', 'srcs', 'tag', 'wide_store', 'note')
    def __init__(self, text, tag=None):
        self.text = text; self.tag = tag; self.note = None
        t = text.split(';')[0].strip()
        self.w = []; self.r = []; self.srcs = []; self.wide_store = False
        if t.endswith(':') or t.startswith('.') or not t:
            self.op = t; self.kind = 'label' if t.endswith(':') else 'dir'; return
        parts = t.split(None, 1)
        op = parts[0]; self.op = op
        rest = parts[1] if len(parts) > 1 else ''
        ops = []
        for tok in rest.split(','):
            tok = tok.strip()
            if tok: ops.append(tok)
        mods = []
        if ops:
            last = ops[-1].split()
            ops[-1] = last[0]; mods = last[1:]
        R = [regs_of(o) for o in ops]
        self.srcs = R
        allr = [x for l in R for x in l]
        if op in ('s_waitcnt', 's_barrier', 's_nop', 's_endpgm', 's_sleep', 's_setprio', 's_branch') or op.startswith('s_cbranch'):
            self.kind = 'ctl'
            if op.startswith('s_cbranch_vcc'): self.r = regs_of('vcc')
            if op.startswith('s_cbranch_exec'): self.r = regs_of('exec')
        elif op.startswith('s_cmp') or op.startswith('s_bitcmp'):
            self.kind = 'salu'; self.r = allr
        elif op.startswith('s_load') or op.startswith('s_memtime') or op.startswith('s_memrealtime'):
            self.kind = 'smem'; self.w = R[0]; self.r = [x for l in R[1:] for x in l]
        elif op.startswith('s_'):
            self.kind = 'salu'; self.w = R[0]; self.r = [x for l in R[1:] for x in l]
            if op in ('s_addk_i32', 's_mulk_i32'): self.r += R[0]
            if 'saveexec' in op: self.w = self.w + regs_of('exec'); self.r += regs_of('exec')
        elif op.startswith('buffer_load') or op.startswith('global_load'):
            if 'lds' in mods or op.startswith('global_load_lds'):
                self.kind = 'dma'; self.r = allr + regs_of('m0')
            else:
                self.kind = 'vload'; self.w = R[0]; self.r = [x for l in R[1:] for x in l]
        elif op.startswith('buffer_store') or op.startswith('global_store'):
            self.kind = 'vstore'; self.r = allr
            self.wide_store = op.endswith('x4') or op.endswith('x3')
        elif op.startswith('buffer_atomic') or op.startswith('global_atomic'):
            self.kind = 'vstore'; self.r = allr
            if 'sc0' in mods: self.kind = 'vload'; self.w = R[0]
        elif op.startswith('buffer_inv') or op.startswith('buffer_wbl2'):
            self.kind = 'vstore'
        elif op.startswith('ds_read') or op.startswith('ds_bpermute') or op.startswith('ds_swizzle'):
            self.kind = 'dsread'; self.w = R[0]; self.r = [x for l in R[1:] for x in l]
        elif op.startswith('ds_'):
            self.kind = 'dswrite'; self.r = allr
        elif op in PASSES:
            self.kind = 'mfma'; self.w = R[0]; self.r = [x for l in R[1:] for x in l]
            if 'smfmac' in op: self.r += R[0]
        elif op.startswith('v_'):
            self.kind = 'valu'
            self.w = R[0]; self.r = [x for l in R[1:] for x in l]
            if 'permlane' in op and 'swap' in op: self.w = allr; self.r = allr
            if op.startswith('v_fmac') or op.startswith('v_dot2c') or op == 'v_writelane_b32': self.r += R[0]
            if op.startswith('v_cndmask') and len(ops) == 3: self.r += regs_of('vcc')
            if any('dpp' in m or m.startswith('row_') or m.startswith('quad_perm') for m in mods): self.note = 'dpp'
        else:
            raise ValueError('unknown op ' + text)
        if self.kind in ('valu', 'mfma', 'vload', 'vstore', 'dma', 'dsread', 'dswrite'):
            self.r += regs_of('exec')

class Prog:
    def __init__(self):
        self.ins = []
    def __call__(self, text, tag=None):
        for line in text.split('\n'):
            line = line.strip()
            if line: self.ins.append(Ins(line, tag))
    def extend(self, lst):
        for x in lst:
            if isinstance(x, Ins): self.ins.append(x)
            else: self(x)
    def wait_vm(self, tag):
        i = Ins('.waitvm'); i.tag = tag; self.ins.append(i)
    def wait_ds(self, tag):
        i = Ins('.waitds'); i.tag = tag; self.ins.append(i)
    def opt_begin(self): self.ins.append(Ins('.optbegin'))
    def opt_end(self): self.ins.append(Ins('.optend'))
    def drain(self):
        self('s_waitcnt vmcnt(0) lgkmcnt(0)')

def I(text, tag=None): return Ins(text, tag)
def waitvm(tag):
    i = Ins('.waitvm'); i.tag = tag; return i
def waitds(tag):
    i = Ins('.waitds'); i.tag = tag; return i

def insert_waits(ins):
    out = []
    vm = []
    lg = []
    maybe = set()
    inblk = None; saved = None
    def sure(lst, k):
        return sum(1 for y in lst[k + 1:] if id(y) not in maybe)
    def retire(lst, n):
        cnt = 0; k = len(lst)
        while k > 0:
            if id(lst[k - 1]) not in maybe:
                if cnt == n: break
                cnt += 1
            elif cnt == n: break
            k -= 1
        del lst[:k]
    def emit_wait(kv, kl):
        parts = []
        if kv is not None:
            nv = min(sure(vm, kv), 63); parts.append(f'vmcnt({nv})'); retire(vm, nv)
        if kl is not None:
            nl = 0 if any(x.kind == 'smem' for x in lg) else min(sure(lg, kl), 15)
            parts.append(f'lgkmcnt({nl})'); retire(lg, nl)
        if parts: out.append(Ins('s_waitcnt ' + ' '.join(parts)))
    for x in ins:
        if x.op == '.optbegin':
            assert inblk is None
            inblk = []; saved = (list(vm), list(lg)); continue
        if x.op == '.optend':
            for y in inblk: maybe.add(id(y))
            newv = [y for y in vm if y in inblk]; newl = [y for y in lg if y in inblk]
            vm[:] = saved[0] + newv; lg[:] = saved[1] + newl
            inblk = None; continue
        if x.op == '.waitvm':
            idx = [k for k, y in enumerate(vm) if y.tag == x.tag]
            if idx: emit_wait(idx[-1], None)
            continue
        if x.op == '.waitds':
            idx = [k for k, y in enumerate(lg) if y.tag == x.tag]
            if idx: emit_wait(None, idx[-1])
            continue
        if x.op == 's_waitcnt':
            m = re.search(r'vmcnt\((\d+)\)', x.text)
            if m: retire(vm, int(m.group(1)))
            m = re.search(r'lgkmcnt\((\d+)\)', x.text)
            if m: retire(lg, int(m.group(1)))
            out.append(x); continue
        touched = set(x.r) | set(x.w)
        nv = nl = None
        for k, y in enumerate(vm):
            if y.w and touched & set(y.w):
                nv = k
        for k, y in enumerate(lg):
            if y.w and touched & set(y.w):
                nl = k
        if nv is not None or nl is not None: emit_wait(nv, nl)
        out.append(x)
        if x.kind in ('vload', 'vstore', 'dma'): vm.append(x)
        elif x.kind in ('dsread', 'dswrite', 'smem'): lg.append(x)
        if inblk is not None and x.kind in ('vload', 'vstore', 'dma', 'dsread', 'dswrite', 'smem'): inblk.append(x)
    return out

def states(x):
    if x.kind in ('label', 'dir'): return 0
    if x.op == 's_nop': return int(x.text.split()[1]) + 1
    return 1

def need(p, c):
    n = 0
    pw = set(p.w); cr = set(c.r); cw = set(c.w)
    vg = lambda S: {x for x in S if x[0] in 'va'}
    sg = lambda S: {x for x in S if x[0] == 's'}
    if p.kind == 'valu':
        if c.kind == 'mfma' and vg(pw) & cr: n = max(n, 2)
        if c.kind == 'valu':
            if vg(pw) & cr:
                if 'permlane' in c.op or c.note == 'dpp': n = max(n, 2)
                if c.op.startswith('v_readlane') or c.op.startswith('v_readfirstlane'): n = max(n, 1)
                if p.op in TRANS and c.op not in TRANS: n = max(n, 1)
            if sg(pw) & cr: n = max(n, 4 if c.op.startswith(('v_readlane', 'v_writelane')) else 2)
        if p.op.startswith('v_dot2'):
            if vg(pw) & (cr | cw):
                same_c = c.op == p.op and len(c.srcs) >= 3 and not (pw & set(c.srcs[1] + c.srcs[2]))
                n = max(n, 0 if same_c else 3)
        if c.kind in ('vload', 'vstore', 'dma') and sg(pw) & cr: n = max(n, 5)
        if c.kind in ('salu', 'ctl', 'smem') and sg(pw) & cr: n = max(n, 4)
        if c.kind == 'mfma' and ('s', 126) in pw: n = max(n, 4)
    if p.kind == 'salu' and ('s', 124) in pw and c.kind == 'dma': n = max(n, 1)
    if p.kind == 'mfma':
        P = PASSES[p.op]
        D = set(p.w)
        if c.kind == 'mfma':
            sm = 'smfmac' in c.op
            cC = set(c.srcs[0]) if sm else set(c.srcs[3])
            cAB = set(c.srcs[1]) | set(c.srcs[2]) | (set(c.srcs[3]) if sm else set())
            if D & cAB: n = max(n, {4: 8, 8: 12}[P])
            if D & cC:
                if not (cC == D and PASSES[c.op] == P): n = max(n, {4: 6, 8: 10}[P])
            elif D & cw and not (D & cC):
                if not (cw == D and PASSES[c.op] == P): n = max(n, {4: 6, 8: 10}[P])
        elif c.kind in ('valu', 'vload', 'vstore', 'dsread', 'dswrite', 'dma'):
            if D & (cr | cw): n = max(n, {4: 8, 8: 12}[P])
            sm = 'smfmac' in p.op
            C = set(p.srcs[0]) if sm else set(p.srcs[3])
            if c.kind == 'valu' and C & cw: n = max(n, {4: 3, 8: 7}[P])
    if p.wide_store and vg(set(p.r)) & cw:
        n = max(n, 2 if c.kind == 'valu' else 1)
    return n

def insert_nops(ins):
    out = []
    for c in ins:
        if c.kind in ('label', 'dir'):
            out.append(c); continue
        dist = 0; pad = 0
        for p in reversed(out):
            if dist >= 20: break
            if p.kind not in ('label', 'dir', 'ctl'):
                nd = need(p, c)
                if nd - dist > pad: pad = nd - dist
            dist += states(p)
        while pad > 0:
            k = min(pad, 16); out.append(Ins(f's_nop {k-1}')); pad -= k
        out.append(c)
    return out

def finalize(prog):
    ins = insert_nops(insert_waits(prog.ins))
    lines = []
    for x in ins:
        lines.append(x.text if x.kind in ('label', 'dir') else '  ' + x.text)
    return '\n'.join(lines) + '\n', ins

def weave(main, side, slots):
    out = []
    n = len(side); m = len(slots)
    assert n <= m, (n, m)
    place = {}
    for k in range(n):
        place.setdefault(slots[(k * m) // n], []).append(side[k])
    for i, x in enumerate(main):
        out.append(x)
        out.extend(place.get(i, []))
    return out
```

```python
import sys
from common import *

def k_qkv():
    p = Prog(); L = 'Lqkv'
    LDS_W, LDS_KV = 0, 102400
    va = ['v4', 'v5', 'v6', 'v7', 'v8']; vtr0, vtr1, vtrkv, vx, vlin = 'v9', 'v10', 'v11', 'v12', 'v13'
    vq = ['v14', 'v15', 'v16', 'v17', 'v18']
    t = ['v%d' % i for i in range(19, 32)]
    X, WR, ACC, KVA = 32, 112, 152, 172
    prologue(p, L + '_exit')
    p(f's_lshl_b32 {sT[0]}, {sRB}, 6')
    p(f's_lshl_b32 {sT[1]}, {sW}, 4')
    p(f's_add_u32 {sT[0]}, {sT[0]}, {sT[1]}')
    p(f'v_add_u32 {t[0]}, {sT[0]}, v2')
    p(f'v_mul_u32_u24 {t[0]}, 1280, {t[0]}')
    p(f'v_lshl_add_u32 {vx}, v3, 4, {t[0]}')
    p(f'v_lshlrev_b32 {vlin}, 4, v1')
    p(f's_lshr_b32 {sT[2]}, {sJ}, 1')
    p(f's_cmp_lg_u32 {sT[2]}, {sW}')
    p(f's_cbranch_scc1 {L}_nokvdma')
    p.opt_begin()
    for q in range(25):
        p(f's_mov_b32 {sT[3]}, {1024*q}')
        p.extend(dma(vlin, S_WKV, sT[3], LDS_KV + 1024 * q, 'wkv'))
    p.opt_end()
    p(f'{L}_nokvdma:')
    for ks in range(20):
        p(f'buffer_load_dwordx4 {v(X+4*ks,4)}, {vx}, s[{S_X}:{S_X+3}], 0 offen offset:{64*ks}')
    w80_addrs(p, va, vtr0, t[:3])
    p(f's_mul_i32 {sT[4]}, {sW}, {5*40960}')
    p(f's_mul_i32 {sT[5]}, {sW}, {5*5120}')
    for k in range(5):
        for q in range(5):
            p.extend(dma(va[q], S_WQ, sT[4], (sT[5], LDS_W + k * 5120 + q * 1024), 'wq'))
        if k < 4: p(f's_add_u32 {sT[4]}, {sT[4]}, 40960')
    p(f'v_add_u32 {vtr1}, 51200, {vtr0}')
    p(f'v_lshrrev_b32 {t[0]}, 2, v2')
    p(f'v_lshl_add_u32 {t[0]}, v3, 3, {t[0]}')
    p(f'v_mul_u32_u24 {t[0]}, 40, {t[0]}')
    p(f'v_and_b32 {t[1]}, 3, v2')
    p(f'v_lshl_add_u32 {t[0]}, {t[1]}, 3, {t[0]}')
    p(f'v_add_u32 {vtrkv}, {LDS_KV}, {t[0]}')
    p(f's_mul_i32 {sT[6]}, s2, 10240')
    p(f's_add_u32 {sT[6]}, {sT[6]}, {WS_Q}')
    p(f's_lshl_b32 {sT[7]}, {sW}, 4')
    p(f'v_add_u32 {t[3]}, {sT[7]}, v2')
    for ft in range(5):
        p(f'v_add_u32 {t[0]}, {4*ft}, v3')
        p(f'v_mul_u32_u24 {t[1]}, 13, {t[0]}')
        p(f'v_lshrrev_b32 {t[1]}, 6, {t[1]}')
        p(f'v_mul_u32_u24 {t[2]}, 5, {t[1]}')
        p(f'v_sub_u32 {t[0]}, {t[0]}, {t[2]}')
        p(f'v_lshrrev_b32 {t[2]}, 1, {t[0]}')
        p(f'v_lshl_add_u32 {t[2]}, {t[1]}, 1, {t[2]}')
        p(f'v_lshlrev_b32 {t[2]}, 10, {t[2]}')
        p(f'v_lshl_add_u32 {t[2]}, {t[3]}, 4, {t[2]}')
        p(f'v_and_b32 {t[4]}, 1, {t[0]}')
        p(f'v_lshl_add_u32 {t[2]}, {t[4]}, 3, {t[2]}')
        p(f'v_lshlrev_b32 {t[1]}, 9, {t[1]}')
        p(f'v_lshl_add_u32 {t[1]}, {t[3]}, 3, {t[1]}')
        p(f'v_add_u32 {t[1]}, 8192, {t[1]}')
        p(f'v_cmp_eq_u32 vcc, 4, {t[0]}')
        p(f'v_cndmask_b32 {t[2]}, {t[2]}, {t[1]}, vcc')
        p(f'v_add_u32 {vq[ft]}, {sT[6]}, {t[2]}')
    s0, s1, q0, q1 = t[0], t[1], t[2], t[3]
    for r in (s0, s1, q0, q1): p(f'v_mov_b32 {r}, 0')
    for r in range(80):
        x = v(X + r)
        p(f'v_dot2_f32_bf16 {(s0,s1)[r&1]}, {x}, {sONES}, {(s0,s1)[r&1]}')
        p(f'v_dot2_f32_bf16 {(q0,q1)[r&1]}, {x}, {x}, {(q0,q1)[r&1]}')
    p(f'v_add_f32 {s0}, {s0}, {s1}')
    p(f'v_add_f32 {q0}, {q0}, {q1}')
    p.extend(allreduce_g([s0, q0], [t[4], t[5]]))
    mean, rstd = t[6], t[7]
    p.extend(ln_from_sums(s0, q0, mean, rstd, t[4]))
    nm = t[8]
    p(f'v_sub_f32 {nm}, 0, {mean}')
    tt = ['v%d' % i for i in range(180, 196)]
    for r0 in range(0, 80, 4):
        b = tt[8 * ((r0 // 4) & 1):]
        for k in range(4):
            p(f'v_dot2_f32_bf16 {b[2*k]}, {v(X+r0+k)}, {sSELLO}, {nm}')
            p(f'v_dot2_f32_bf16 {b[2*k+1]}, {v(X+r0+k)}, {sSELHI}, {nm}')
        for k in range(4):
            p(f'v_cvt_pk_bf16_f32 {v(X+r0+k)}, {b[2*k]}, {b[2*k+1]}')
    p(f's_lshr_b32 {sT[2]}, {sJ}, 1')
    p(f's_cmp_lg_u32 {sT[2]}, {sW}')
    p(f's_cbranch_scc1 {L}_nokv')
    p.opt_begin()
    p('s_waitcnt vmcnt(0)')
    p(f's_lshr_b32 {sT[3]}, {sJ}, 2')
    p(f's_lshl_b32 {sT[7]}, {sRB}, 1')
    p(f's_add_u32 {sT[3]}, {sT[3]}, {sT[7]}')
    p(f's_mul_i32 {sT[3]}, {sT[3]}, {KVT}')
    p(f's_and_b32 {sT[7]}, {sT[2]}, 1')
    PK = 196
    def kv_reads(ks):
        b = WR + 8 * (ks & 1)
        for ft in range(2):
            for half in range(2):
                p(f'ds_read_b64_tr_b16 {v(b+4*ft+2*half,2)}, {vtrkv} offset:{ks*1280 + half*160 + ft*32}')
    def kv_body(isv):
        kv_reads(0)
        for ks in range(20):
            if ks + 1 < 20: kv_reads(ks + 1)
            b = WR + 8 * (ks & 1)
            for ft in range(2):
                c = '0' if ks == 0 else v(KVA + 4 * ft, 4)
                A, B = v(b + 4 * ft, 4), v(X + 4 * ks, 4)
                if isv: A, B = B, A
                p(f'v_mfma_f32_16x16x32_bf16 {v(KVA+4*ft,4)}, {A}, {B}, {c}')
    p(f's_bitcmp1_b32 {sJ}, 0')
    p(f's_cbranch_scc1 {L}_v')
    kv_body(False)
    for k in range(8): p(f'v_mul_f32 {v(KVA+k)}, {v(KVA+k)}, {rstd}')
    for k in range(4): p(f'v_cvt_pk_bf16_f32 {v(PK+k)}, {v(KVA+2*k)}, {v(KVA+2*k+1)}')
    p('v_cmp_eq_u32 vcc, 1, v3')
    p(f'v_mov_b32 {t[0]}, {sONES}')
    p(f'v_mov_b32 {t[1]}, {sSELLO}')
    p(f'v_cndmask_b32 {v(PK+2)}, {v(PK+2)}, {t[0]}, vcc')
    p(f'v_cndmask_b32 {v(PK+3)}, {v(PK+3)}, {t[1]}, vcc')
    p(f'v_lshrrev_b32 {t[0]}, 1, v3')
    p(f'v_lshlrev_b32 {t[0]}, 9, {t[0]}')
    p(f'v_and_b32 {t[1]}, 1, v3')
    p(f'v_lshl_add_u32 {t[0]}, {t[1]}, 10, {t[0]}')
    p(f'v_lshl_add_u32 {t[0]}, v2, 4, {t[0]}')
    p(f's_lshl_b32 {sT[7]}, {sT[7]}, 8')
    p(f's_add_u32 {sT[3]}, {sT[3]}, {sT[7]}')
    p(f'v_add_u32 {t[0]}, {sT[3]}, {t[0]}')
    p(f'v_mov_b32 {t[1]}, {OOB}')
    p('v_cmp_eq_u32 vcc, 3, v3')
    p(f'v_cndmask_b32 {t[0]}, {t[0]}, {t[1]}, vcc')
    p(f's_branch {L}_kvst')
    p(f'{L}_v:')
    p('s_nop 7')
    kv_body(True)
    p(f'v_lshlrev_b32 {t[0]}, 4, v3')
    for k in range(4):
        p(f'ds_bpermute_b32 {t[1+k]}, {t[0]}, {rstd} offset:{4*k}')
    for k in range(8): p(f'v_mul_f32 {v(KVA+k)}, {v(KVA+k)}, {t[1+(k&3)]}')
    for k in range(4): p(f'v_cvt_pk_bf16_f32 {v(PK+k)}, {v(KVA+2*k)}, {v(KVA+2*k+1)}')
    p('v_cmp_eq_u32 vcc, 4, v2')
    p(f'v_mov_b32 {t[0]}, {sONES}')
    p(f'v_cndmask_b32 {v(PK+2)}, {v(PK+2)}, {t[0]}, vcc')
    p(f'v_cndmask_b32 {v(PK+3)}, {v(PK+3)}, {t[0]}, vcc')
    p(f'v_lshrrev_b32 {t[0]}, 1, v3')
    p(f'v_lshlrev_b32 {t[0]}, 9, {t[0]}')
    p(f'v_and_b32 {t[1]}, 1, v3')
    p(f'v_lshl_add_u32 {t[0]}, {t[1]}, 8, {t[0]}')
    p(f'v_lshl_add_u32 {t[0]}, v2, 4, {t[0]}')
    p(f's_lshl_b32 {sT[7]}, {sT[7]}, 10')
    p(f's_add_u32 {sT[3]}, {sT[3]}, {sT[7]}')
    p(f's_add_u32 {sT[3]}, {sT[3]}, 1536')
    p(f'v_add_u32 {t[0]}, {sT[3]}, {t[0]}')
    p(f'{L}_kvst:')
    p('s_nop 1')
    p(f'v_permlane16_swap_b32 {v(PK)}, {v(PK+2)}')
    p(f'v_permlane16_swap_b32 {v(PK+1)}, {v(PK+3)}')
    p(f'v_add_u32 {t[0]}, {WS_KV}, {t[0]}')
    p(f'buffer_store_dwordx4 {v(PK,4)}, {t[0]}, s[{S_WS}:{S_WS+3}], 0 offen')
    p('s_waitcnt lgkmcnt(0)')
    p('s_nop 1')
    p.opt_end()
    p(f'{L}_nokv:')
    p('s_waitcnt vmcnt(0)')
    p('s_barrier')
    def w_reads(ks):
        b = WR + 20 * (ks & 1)
        base = vtr0 if ks < 10 else vtr1
        return [I(f'ds_read_b64_tr_b16 {v(b+4*ft+2*half,2)}, {base} offset:{LDS_W + (ks%10)*5120 + half*1280 + ft*32}')
                for ft in range(5) for half in range(2)]
    p.extend(w_reads(0))
    for ks in range(20):
        nxt = w_reads(ks + 1) if ks + 1 < 20 else []
        b = WR + 20 * (ks & 1)
        for ft in range(5):
            c = '0' if ks == 0 else v(ACC + 4 * ft, 4)
            p(f'v_mfma_f32_16x16x32_bf16 {v(ACC+4*ft,4)}, {v(b+4*ft,4)}, {v(X+4*ks,4)}, {c}')
            p.extend(nxt[2*ft:2*ft+2])
    p(f'v_mul_f32 {rstd}, {fhex(QSCALE)}, {rstd}')
    for ft in range(5):
        for k in range(4): p(f'v_mul_f32 {v(ACC+4*ft+k)}, {v(ACC+4*ft+k)}, {rstd}')
        p(f'v_cvt_pk_bf16_f32 {v(WR+2*ft)}, {v(ACC+4*ft)}, {v(ACC+4*ft+1)}')
        p(f'v_cvt_pk_bf16_f32 {v(WR+2*ft+1)}, {v(ACC+4*ft+2)}, {v(ACC+4*ft+3)}')
        p(f'buffer_store_dwordx2 {v(WR+2*ft,2)}, {vq[ft]}, s[{S_WS}:{S_WS+3}], 0 offen')
    p(f'{L}_exit:')
    p('s_endpgm')
    return p

O_, S_, QH, QM, KV = 20, 84, 132, 140, 156
DEPTH = 4
def kvreg(t): return KV + 14 * (t % DEPTH)

def att_kv_loads(t, vkv, vkh, sbase):
    b = kvreg(t)
    return [I(f'buffer_load_dwordx4 {v(b,4)}, {vkv}, s[{S_WS}:{S_WS+3}], {sbase} offen'),
            I(f'buffer_load_dwordx2 {v(b+12,2)}, {vkh}, s[{S_WS}:{S_WS+3}], {sbase} offen'),
            I(f'buffer_load_dwordx4 {v(b+4,4)}, {vkv}, s[{S_WS}:{S_WS+3}], {sbase} offen offset:1536'),
            I(f'buffer_load_dwordx4 {v(b+8,4)}, {vkv}, s[{S_WS}:{S_WS+3}], {sbase} offen offset:2560'),
            I(f's_add_u32 {sbase}, {sbase}, {KVT}')]

def k_att():
    p = Prog(); L = 'Latt'
    vkv, vkh, vidx, vex, vo, vo3 = 'v4', 'v5', 'v6', 'v7', 'v8', 'v9'
    t = ['v%d' % i for i in range(10, 20)]
    sKV, sPASS, sKV0 = sT[10], sT[11], sT[12]
    LDS_EX, LDS_VOTE = 0, 24576
    prologue(p, L + '_exit')
    p(f'v_and_b32 {t[0]}, 31, v1')
    p(f'v_lshrrev_b32 {t[1]}, 5, v1')
    p(f'v_lshlrev_b32 {vkv}, 4, v1')
    p(f'v_lshlrev_b32 {vkh}, 4, {t[0]}')
    p(f'v_lshl_add_u32 {vkh}, {t[1]}, 3, {vkh}')
    p(f'v_add_u32 {vkh}, 1024, {vkh}')
    p(f'v_mov_b32 {vidx}, 0xdddd')
    p(f's_and_b32 {sT[0]}, {sW}, 1')
    p(f's_lshr_b32 {sT[1]}, {sW}, 1')
    p(f's_mul_i32 {sKV0}, {sT[0]}, {32*KVT}')
    p(f's_add_u32 {sKV0}, {sKV0}, {WS_KV}')
    p(f's_mul_i32 {sT[2]}, s2, 10240')
    p(f's_add_u32 {sT[2]}, {sT[2]}, {WS_Q}')
    p(f's_lshl_b32 {sT[3]}, {sT[1]}, 5')
    p(f'v_add_u32 {t[2]}, {sT[3]}, {t[0]}')
    p(f'v_lshlrev_b32 {t[3]}, 4, {t[2]}')
    p(f'v_lshl_add_u32 {t[3]}, {t[1]}, 10, {t[3]}')
    p(f'v_lshlrev_b32 {t[4]}, 3, {t[2]}')
    p(f'v_add_u32 {t[4]}, 8192, {t[4]}')
    p(f'v_mov_b32 {t[5]}, {OOB}')
    p(f'v_cmp_eq_u32 vcc, 1, {t[1]}')
    p(f'v_cndmask_b32 {t[4]}, {t[4]}, {t[5]}, vcc')
    for b in range(4):
        p(f's_lshl_b32 {sT[4]}, {sT[0]}, 1')
        p(f's_add_u32 {sT[4]}, {sT[4]}, {b}')
        p(f's_and_b32 {sT[4]}, {sT[4]}, 3')
        p(f's_lshl_b32 {sT[5]}, {sT[4]}, 11')
        p(f's_add_u32 {sT[5]}, {sT[5]}, {sT[2]}')
        p(f's_lshl_b32 {sT[6]}, {sT[4]}, 9')
        p(f's_add_u32 {sT[6]}, {sT[6]}, {sT[2]}')
        p(f'buffer_load_dwordx4 {v(QM+4*b,4)}, {t[3]}, s[{S_WS}:{S_WS+3}], {sT[5]} offen')
        p(f'buffer_load_dwordx2 {v(QH+2*b,2)}, {t[4]}, s[{S_WS}:{S_WS+3}], {sT[6]} offen')
    p(f's_mul_i32 {sT[4]}, {sW}, 6144')
    p(f'v_add_u32 {vex}, {sT[4]}, {vkv}')
    p(f's_lshl_b32 {sT[4]}, {sRB}, 2')
    p(f's_lshl_b32 {sT[5]}, {sT[1]}, 1')
    p(f's_add_u32 {sT[4]}, {sT[4]}, {sT[5]}')
    p(f'v_and_b32 {t[2]}, 1, v3')
    p(f'v_add_u32 {t[2]}, {sT[4]}, {t[2]}')
    p(f'v_mul_u32_u24 {t[2]}, 20480, {t[2]}')
    p(f's_mul_i32 {sT[4]}, {sJ}, 10')
    p(f's_mul_i32 {sT[5]}, {sT[0]}, 5')
    p(f's_add_u32 {sT[4]}, {sT[4]}, {sT[5]}')
    p(f'v_add_u32 {t[3]}, {sT[4]}, {t[1]}')
    p(f'v_lshl_add_u32 {t[2]}, {t[3]}, 8, {t[2]}')
    p(f'v_lshl_add_u32 {t[2]}, v2, 4, {t[2]}')
    p(f'v_add_u32 {vo}, {WS_O}, {t[2]}')
    p(f'v_cndmask_b32 {vo3}, {t[5]}, {vo}, vcc')
    p(f's_mov_b32 {sPASS}, 0')
    p(f'{L}_main:')
    p(f's_mov_b32 {sKV}, {sKV0}')
    for tt in range(DEPTH - 1): p.extend(att_kv_loads(tt, vkv, vkh, sKV))
    for r in range(64): p(f'v_mov_b32 {v(O_+r)}, 0')
    NT = 128
    def sb(n): return S_ + 16 * (n % 3)
    def M(n): return I(f'v_mfma_f32_32x32x16_bf16 {v(sb(n),16)}, {v(kvreg(n//4),4)}, {v(QM+4*(n%4),4)}, 0')
    def H(n): return I(f'v_mfma_f32_32x32x8_bf16 {v(sb(n),16)}, {v(kvreg(n//4)+12,2)}, {v(QH+2*(n%4),2)}, {v(sb(n),16)}')
    def SM(n, half): return I(f'v_smfmac_f32_32x32x32_bf16 {v(O_+16*(n%4),16)}, {v(kvreg(n//4)+4+4*half,4)}, {v(sb(n)+8*half,8)}, {vidx}')
    def E(n, k): return I(f'v_exp_f32 {v(sb(n)+k)}, {v(sb(n)+k)}')
    p.extend([M(0), H(0)])
    pend = []
    for n in range(NT):
        tk, qb = divmod(n, 4)
        if qb == 1 and tk + DEPTH - 1 < 32: pend = att_kv_loads(tk + DEPTH - 1, vkv, vkh, sKV)
        if n + 1 < NT: p.extend([M(n + 1)])
        p.extend([E(n, k) for k in range(0, 4)])
        if n + 1 < NT: p.extend([H(n + 1)])
        p.extend([E(n, k) for k in range(4, 8)])
        if n > 0: p.extend([SM(n - 1, 1)])
        if pend: p.extend([pend.pop(0)])
        p.extend([E(n, k) for k in range(8, 12)])
        p.extend([SM(n, 0)])
        if pend: p.extend([pend.pop(0)])
        p.extend([E(n, k) for k in range(12, 16)])
    p.extend([SM(NT - 1, 1)])
    for b in range(2):
        for q in range(3):
            p(f'ds_write_b128 {vex}, {v(O_+16*(2+b)+4*q,4)} offset:{LDS_EX + (3*b+q)*1024}')
    p(f's_xor_b32 {sT[4]}, {sW}, 1')
    p(f's_mul_i32 {sT[4]}, {sT[4]}, 6144')
    p(f'v_add_u32 {t[0]}, {sT[4]}, {vkv}')
    p('s_waitcnt lgkmcnt(0)')
    p('s_barrier')
    for q in range(6):
        p(f'ds_read_b128 {v(S_+4*q,4)}, {t[0]} offset:{LDS_EX + q*1024}')
    for b in range(2):
        for k in range(12):
            p(f'v_add_f32 {v(O_+16*b+k)}, {v(O_+16*b+k)}, {v(S_+12*b+k)}')
    lsum = [t[1], t[2]]
    for b in range(2):
        p(f'v_mov_b32 {t[3+b]}, {v(O_+16*b+8)}')
        p(f'v_mov_b32 {lsum[b]}, {v(O_+16*b+8)}')
    for b in range(2): p(f'v_permlane32_swap_b32 {t[3+b]}, {lsum[b]}')
    p(f's_mov_b32 {sT[4]}, {fhex(2.0**-60)}')
    p(f's_mov_b32 {sT[5]}, {fhex(2.0**60)}')
    p(f'v_cmp_ge_f32 s[90:91], {lsum[0]}, {sT[4]}')
    p(f'v_cmp_le_f32 s[92:93], {lsum[0]}, {sT[5]}')
    p(f'v_cmp_ge_f32 s[94:95], {lsum[1]}, {sT[4]}')
    p(f'v_cmp_le_f32 s[96:97], {lsum[1]}, {sT[5]}')
    p('s_and_b64 s[90:91], s[90:91], s[92:93]')
    p('s_and_b64 s[94:95], s[94:95], s[96:97]')
    p('s_and_b64 s[90:91], s[90:91], s[94:95]')
    p('s_cmp_eq_u64 s[90:91], -1')
    p(f's_cselect_b32 {sT[4]}, 0, 1')
    p(f'v_mov_b32 {t[5]}, {sT[4]}')
    p(f's_lshl_b32 {sT[5]}, {sW}, 2')
    p(f'v_mov_b32 {t[6]}, {sT[5]}')
    p(f'ds_write_b32 {t[6]}, {t[5]} offset:{LDS_VOTE}')
    p(f'v_mov_b32 {t[6]}, 0')
    p('s_waitcnt lgkmcnt(0)')
    p('s_barrier')
    p(f'ds_read_b128 {v(S_+24,4)}, {t[6]} offset:{LDS_VOTE}')
    for b in range(2): p(f'v_rcp_f32 {lsum[b]}, {lsum[b]}')
    PKR = S_ + 28
    for b in range(2):
        for k in range(12): p(f'v_mul_f32 {v(O_+16*b+k)}, {v(O_+16*b+k)}, {lsum[b]}')
    dst = [[0, 2, 4], [6, 8, 12]]
    for b in range(2):
        for q in range(3):
            for k in range(2):
                p(f'v_cvt_pk_bf16_f32 {v(PKR+dst[b][q]+k)}, {v(O_+16*b+4*q+2*k)}, {v(O_+16*b+4*q+2*k+1)}')
    p(f'v_or3_b32 {t[5]}, {v(S_+24)}, {v(S_+25)}, {v(S_+26)}')
    p(f'v_or_b32 {t[5]}, {t[5]}, {v(S_+27)}')
    p(f'v_readfirstlane_b32 {sT[4]}, {t[5]}')
    p(f's_xor_b32 {sT[5]}, {sPASS}, 1')
    p(f's_and_b32 {sT[4]}, {sT[4]}, {sT[5]}')
    p(f's_cmp_lg_u32 {sT[4]}, 0')
    p(f's_cbranch_scc1 {L}_slow')
    for x, y in ((0, 2), (6, 8), (4, 8), (10, 12)):
        for k in range(2): p(f'v_permlane32_swap_b32 {v(PKR+x+k)}, {v(PKR+y+k)}')
    p(f'buffer_store_dwordx4 {v(PKR,4)}, {vo}, s[{S_WS}:{S_WS+3}], 0 offen')
    p(f'buffer_store_dwordx4 {v(PKR+4,4)}, {vo}, s[{S_WS}:{S_WS+3}], 0 offen offset:512')
    p(f'buffer_store_dwordx4 {v(PKR+8,4)}, {vo3}, s[{S_WS}:{S_WS+3}], 0 offen offset:768')
    p(f'{L}_exit:')
    p('s_endpgm')
    p(f'{L}_slow:')
    p('s_waitcnt vmcnt(0) lgkmcnt(0)')
    p('s_nop 15')
    MX = O_
    for b in range(4): p(f'v_mov_b32 {v(MX+b)}, 0xff800000')
    p(f's_mov_b32 {sKV}, {sKV0}')
    p(f's_mov_b32 {sT[4]}, 32')
    p(f'{L}_sloop:')
    p.extend(att_kv_loads(0, vkv, vkh, sKV))
    p('s_waitcnt vmcnt(0)')
    for b in range(4):
        p(f'v_mfma_f32_32x32x16_bf16 {v(S_,16)}, {v(KV,4)}, {v(QM+4*b,4)}, 0')
        p(f'v_mfma_f32_32x32x8_bf16 {v(S_,16)}, {v(KV+12,2)}, {v(QH+2*b,2)}, {v(S_,16)}')
        for k in range(0, 16, 2): p(f'v_max3_f32 {v(MX+b)}, {v(MX+b)}, {v(S_+k)}, {v(S_+k+1)}')
        p('s_nop 1')
    p(f's_sub_u32 {sT[4]}, {sT[4]}, 1')
    p(f's_cmp_lg_u32 {sT[4]}, 0')
    p(f's_cbranch_scc1 {L}_sloop')
    for b in range(4): p(f'v_mov_b32 {v(MX+4+b)}, {v(MX+b)}')
    for b in range(4): p(f'v_permlane32_swap_b32 {v(MX+4+b)}, {v(MX+b)}')
    for b in range(4): p(f'v_max_f32 {v(MX+b)}, {v(MX+b)}, {v(MX+4+b)}')
    p('s_barrier')
    p(f'ds_write_b128 {vex}, {v(MX,4)} offset:{LDS_EX}')
    p(f's_xor_b32 {sT[4]}, {sW}, 1')
    p(f's_mul_i32 {sT[4]}, {sT[4]}, 6144')
    p(f'v_add_u32 {t[0]}, {sT[4]}, {vkv}')
    p('s_waitcnt lgkmcnt(0)')
    p('s_barrier')
    p(f'ds_read_b128 {v(MX+4,4)}, {t[0]} offset:{LDS_EX}')
    p('s_waitcnt lgkmcnt(0)')
    p('s_barrier')
    p('v_cmp_lt_u32 vcc, 31, v1')
    for b in range(4):
        m, hi, mid, lo = v(MX + b), t[1], t[2], t[3]
        p(f'v_max_f32 {m}, {m}, {v(MX+4+((b+2)&3))}')
        p(f'v_sub_f32 {m}, 0, {m}')
        p(f'v_and_b32 {hi}, 0xffff0000, {m}')
        p(f'v_sub_f32 {m}, {m}, {hi}')
        p(f'v_and_b32 {mid}, 0xffff0000, {m}')
        p(f'v_sub_f32 {m}, {m}, {mid}')
        p(f'v_lshrrev_b32 {hi}, 16, {hi}')
        p(f'v_or_b32 {hi}, {hi}, {mid}')
        p(f'v_lshrrev_b32 {lo}, 16, {m}')
        p(f'v_cndmask_b32 {v(QH+2*b)}, {v(QH+2*b)}, {hi}, vcc')
        p(f'v_cndmask_b32 {v(QH+2*b+1)}, {v(QH+2*b+1)}, {lo}, vcc')
    p(f's_mov_b32 {sPASS}, 1')
    p('s_nop 7')
    p(f's_branch {L}_main')
    return p

def k_oproj():
    p = Prog(); L = 'Lop'
    LDS_W = 0
    va = ['v4', 'v5', 'v6', 'v7', 'v8']; vtr0, vtr1, vo, vxr, vh, vh4, vst = 'v9', 'v10', 'v11', 'v12', 'v13', 'v14', 'v15'
    t = ['v%d' % i for i in range(19, 32)]
    X, WR, ACC, XR, HP = 32, 112, 152, 172, 184
    prologue(p, L + '_exit')
    w80_addrs(p, va, vtr0, t[:3])
    p(f's_mul_i32 {sT[4]}, {sW}, {5*40960}')
    p(f's_mul_i32 {sT[5]}, {sW}, {5*5120}')
    for k in range(5):
        for q in range(5):
            p.extend(dma(va[q], S_WO, sT[4], (sT[5], LDS_W + k * 5120 + q * 1024), 'wo'))
        if k < 4: p(f's_add_u32 {sT[4]}, {sT[4]}, 40960')
    p(f'v_add_u32 {vtr1}, 51200, {vtr0}')
    p(f's_lshl_b32 {sT[0]}, {sRB}, 2')
    p(f's_add_u32 {sT[0]}, {sT[0]}, {sW}')
    p(f's_mul_i32 {sT[1]}, {sT[0]}, 20480')
    p(f's_add_u32 {sT[2]}, {sT[1]}, {WS_O}')
    p(f'v_lshlrev_b32 {vo}, 4, v1')
    for ks in range(20):
        if ks % 4 == 0 and ks: p(f's_add_u32 {sT[2]}, {sT[2]}, 4096')
        p(f'buffer_load_dwordx4 {v(X+4*ks,4)}, {vo}, s[{S_WS}:{S_WS+3}], {sT[2]} offen offset:{1024*(ks%4)}')
    p(f's_lshl_b32 {sT[3]}, {sT[0]}, 4')
    p(f'v_add_u32 {t[0]}, {sT[3]}, v2')
    p(f'v_mul_u32_u24 {t[1]}, 1280, {t[0]}')
    p(f's_mul_i32 {sT[3]}, {sJ}, 160')
    p(f'v_lshl_add_u32 {t[1]}, v3, 3, {t[1]}')
    p(f'v_add_u32 {vxr}, {sT[3]}, {t[1]}')
    for ft in range(5):
        p(f'buffer_load_dwordx2 {v(XR+2*ft,2)}, {vxr}, s[{S_X}:{S_X+3}], 0 offen offset:{32*ft}')
    p(f's_mul_i32 {sT[3]}, {sJ}, 2560')
    p(f's_add_u32 {sT[3]}, {sT[3]}, {sT[1]}')
    p(f's_add_u32 {sT[3]}, {sT[3]}, {WS_H}')
    p(f'v_and_b32 {t[1]}, 1, v3')
    p(f'v_lshrrev_b32 {t[2]}, 1, v3')
    p(f'v_lshl_add_u32 {t[3]}, {t[1]}, 1, {t[2]}')
    p(f'v_lshlrev_b32 {t[3]}, 8, {t[3]}')
    p(f'v_lshl_add_u32 {t[3]}, v2, 4, {t[3]}')
    p(f'v_add_u32 {vh}, {sT[3]}, {t[3]}')
    p(f'v_mov_b32 {t[4]}, {OOB}')
    p(f'v_cmp_eq_u32 vcc, 1, {t[1]}')
    p(f'v_cndmask_b32 {vh4}, {vh}, {t[4]}, vcc')
    p(f'v_lshlrev_b32 {t[0]}, 6, {t[0]}')
    p(f's_lshl_b32 {sT[3]}, {sJ}, 3')
    p(f's_add_u32 {sT[3]}, {sT[3]}, {WS_ST}')
    p(f'v_add_u32 {t[0]}, {sT[3]}, {t[0]}')
    p('v_cmp_eq_u32 vcc, 0, v3')
    p(f'v_cndmask_b32 {vst}, {t[4]}, {t[0]}, vcc')
    p.wait_vm('wo')
    p('s_barrier')
    def w_reads(ks):
        b = WR + 20 * (ks & 1)
        base = vtr0 if ks < 10 else vtr1
        return [I(f'ds_read_b64_tr_b16 {v(b+4*ft+2*half,2)}, {base} offset:{LDS_W + (ks%10)*5120 + half*1280 + ft*32}')
                for ft in range(5) for half in range(2)]
    p.extend(w_reads(0))
    for ks in range(20):
        nxt = w_reads(ks + 1) if ks + 1 < 20 else []
        b = WR + 20 * (ks & 1)
        for ft in range(5):
            c = '0' if ks == 0 else v(ACC + 4 * ft, 4)
            p(f'v_mfma_f32_16x16x32_bf16 {v(ACC+4*ft,4)}, {v(b+4*ft,4)}, {v(X+4*ks,4)}, {c}')
            p.extend(nxt[2*ft:2*ft+2])
    for ft in range(5):
        for k in range(4):
            p(f'v_dot2_f32_bf16 {v(WR+4*ft+k)}, {v(XR+2*ft+(k>>1))}, {(sSELLO,sSELHI)[k&1]}, {v(ACC+4*ft+k)}')
    for ft in range(5):
        for k in range(2):
            p(f'v_cvt_pk_bf16_f32 {v(HP+2*ft+k)}, {v(WR+4*ft+2*k)}, {v(WR+4*ft+2*k+1)}')
    sm, sq = v(200), v(201)
    p(f'v_mov_b32 {sm}, 0'); p(f'v_mov_b32 {sq}, 0')
    for r in range(10):
        p(f'v_dot2_f32_bf16 {sm}, {v(HP+r)}, {sONES}, {sm}')
        p(f'v_dot2_f32_bf16 {sq}, {v(HP+r)}, {v(HP+r)}, {sq}')
    for x, y in ((0, 2), (4, 6), (8, 10)):
        for k in range(2): p(f'v_permlane16_swap_b32 {v(HP+x+k)}, {v(HP+y+k)}')
    p(f'buffer_store_dwordx4 {v(HP,4)}, {vh}, s[{S_WS}:{S_WS+3}], 0 offen')
    p(f'buffer_store_dwordx4 {v(HP+4,4)}, {vh}, s[{S_WS}:{S_WS+3}], 0 offen offset:1024')
    p(f'buffer_store_dwordx4 {v(HP+8,4)}, {vh4}, s[{S_WS}:{S_WS+3}], 0 offen offset:2048')
    p.extend(allreduce_g([sm, sq], [t[0], t[1]]))
    p(f'buffer_store_dwordx2 v[200:201], {vst}, s[{S_WS}:{S_WS+3}], 0 offen')
    p(f'{L}_exit:')
    p('s_endpgm')
    return p

def k_ffn1():
    p = Prog(); L = 'Lf1'
    LDS_H, LDS_ST = 0, 102400
    va = ['v4', 'v5', 'v6']; vtrA, vtrB, vlin0, vlin1, vg, vg2 = 'v7', 'v8', 'v9', 'v10', 'v11', 'v12'
    t = ['v%d' % i for i in range(14, 32)]
    ACC, HR, CS, STT, T2C, GP, G2, TM, ONE = 32, 56, 72, 84, 100, 108, 112, 116, 140
    STL = 144
    prologue(p, L + '_exit')
    p(f'v_lshlrev_b32 {vlin0}, 4, v1')
    p(f'v_add_u32 {vlin1}, 61440, {vlin0}')
    p(f's_mul_i32 {sT[0]}, {sC}, 192')
    p(f's_mul_i32 {sT[1]}, {sW}, 48')
    p(f's_add_u32 {sT[0]}, {sT[0]}, {sT[1]}')
    for q in range(3):
        p(f'v_add_u32 {t[0]}, {64*q}, v1')
        p(f'v_mul_u32_u24 {t[1]}, 0xab, {t[0]}')
        p(f'v_lshrrev_b32 {t[1]}, 9, {t[1]}')
        p(f'v_mul_u32_u24 {t[2]}, 3, {t[1]}')
        p(f'v_sub_u32 {t[0]}, {t[0]}, {t[2]}')
        p(f'v_mul_u32_u24 {t[1]}, 3072, {t[1]}')
        p(f'v_lshl_add_u32 {t[0]}, {t[0]}, 4, {t[1]}')
        p(f'v_add_u32 {va[q]}, {sT[0]}, {t[0]}')
    p(f's_mul_i32 {sT[2]}, {sW}, 12288')
    p(f's_add_u32 {sT[2]}, {sT[2]}, {LDS_ST}')
    p(f'v_lshrrev_b32 {t[0]}, 2, v2')
    p(f'v_lshl_add_u32 {t[0]}, v3, 3, {t[0]}')
    p(f'v_mul_u32_u24 {t[0]}, 48, {t[0]}')
    p(f'v_add_u32 {t[0]}, {sT[2]}, {t[0]}')
    p(f'v_and_b32 {t[1]}, 3, v2')
    p(f'v_lshl_add_u32 {vtrA}, {t[1]}, 3, {t[0]}')
    p(f'v_and_b32 {t[2]}, 1, v2')
    p(f'v_lshl_add_u32 {t[0]}, {t[2]}, 3, {t[0]}')
    p(f'v_lshrrev_b32 {t[1]}, 1, {t[1]}')
    p(f'v_mul_u32_u24 {t[1]}, 3072, {t[1]}')
    p(f'v_add3_u32 {vtrB}, {t[0]}, {t[1]}, 32')
    p(f's_lshl_b32 {sT[3]}, {sG}, 3')
    p(f's_mul_i32 {sT[4]}, {sT[3]}, 20480')
    p(f's_mul_i32 {sT[5]}, {sW}, 5120')
    p(f's_add_u32 {sT[4]}, {sT[4]}, {sT[5]}')
    p(f's_add_u32 {sT[4]}, {sT[4]}, {WS_H}')
    sH = sT[4]
    def h_dma(r):
        out = []
        for q in range(5):
            out += dma(vlin0, S_WS, sH, (sT[5], LDS_H + (r % 5) * 20480 + q * 1024), f'h{r}')
            out.append(I(f's_add_u32 {sH}, {sH}, {1024 if q < 4 else 20480 - 4096}'))
        return out
    p(f's_lshl_b32 {sT[6]}, {sG}, 7')
    p(f'v_add_u32 {t[0]}, {sT[6]}, v2')
    p(f'v_lshlrev_b32 {t[0]}, 6, {t[0]}')
    p(f'v_lshl_add_u32 {t[0]}, v3, 4, {t[0]}')
    p(f'v_add_u32 {t[0]}, {WS_ST}, {t[0]}')
    for r in range(8):
        p(f's_mov_b32 {sT[6]}, {1024*r}')
        p(f'buffer_load_dwordx4 {v(STL+4*r,4)}, {t[0]}, s[{S_WS}:{S_WS+3}], {sT[6]} offen')
    for r in range(5): p.extend(h_dma(r))
    sK = sT[6]
    p(f's_mov_b32 {sK}, 0')
    def w_dma(kk):
        out = []
        for m, sr in enumerate((S_W1, S_W3)):
            for q in range(3):
                out += dma(va[q], sr, sK, (sT[2], (kk & 1) * 6144 + m * 3072 + q * 1024), f'w{kk}')
        out.append(I(f's_add_u32 {sK}, {sK}, 196608'))
        return out
    def w_tr(kk):
        out = []
        for sx in range(2):
            ks = 2 * kk + sx
            for T in range(3):
                for half in range(2):
                    base = vtrB if T == 2 else vtrA
                    off = (kk & 1) * 6144 + (3072 if T == 1 else 0) + sx * 1536 + half * 192
                    out.append(I(f'ds_read_b64_tr_b16 {a(12*ks+4*T+2*half,2)}, {base} offset:{off}', 'wtr'))
        return out
    p.extend(w_dma(0)); p.extend(w_dma(1))
    for kk in range(10):
        p.wait_vm(f'w{kk}')
        p.extend(w_tr(kk))
        p.wait_ds('wtr')
        if kk + 2 < 10: p.extend(w_dma(kk + 2))
    for k in range(4): p(f'v_mov_b32 {v(ONE+k)}, {sONES}')
    for ks in range(20):
        for T in range(3):
            c = '0' if ks == 0 else v(CS + 4 * T, 4)
            p(f'v_mfma_f32_16x16x32_bf16 {v(CS+4*T,4)}, {a(12*ks+4*T,4)}, {v(ONE,4)}, {c}')
    for r in range(8):
        b = STL + 4 * r
        p(f'v_add_f32 {v(b)}, {v(b)}, {v(b+2)}')
        p(f'v_add_f32 {v(b+1)}, {v(b+1)}, {v(b+3)}')
        p.extend(allreduce_g([v(b), v(b + 1)], [t[0], t[1]]))
        p.extend(ln_from_sums(v(b), v(b + 1), t[2], v(STT + 2 * r), t[3]))
        p(f'v_mul_f32 {v(STT+2*r+1)}, {t[2]}, {v(STT+2*r)}')
        p(f'v_sub_f32 {v(STT+2*r+1)}, 0, {v(STT+2*r+1)}')
    p(f's_lshl_b32 {sT[7]}, {sC}, 2')
    p(f's_add_u32 {sT[7]}, {sT[7]}, {sW}')
    p(f's_mul_i32 {sT[7]}, {sT[7]}, 768')
    p(f's_mul_i32 {sT[8]}, {sT[3]}, 49152')
    p(f's_add_u32 {sT[7]}, {sT[7]}, {sT[8]}')
    p(f's_add_u32 {sT[7]}, {sT[7]}, {WS_G}')
    p(f'v_and_b32 {t[0]}, 1, v3')
    p(f'v_lshrrev_b32 {t[1]}, 1, v3')
    p(f'v_mul_u32_u24 {t[2]}, 49152, {t[0]}')
    p(f'v_lshl_add_u32 {t[2]}, {t[1]}, 8, {t[2]}')
    p(f'v_lshl_add_u32 {t[2]}, v2, 4, {t[2]}')
    p(f'v_add_u32 {vg}, {sT[7]}, {t[2]}')
    p(f'v_lshl_add_u32 {t[0]}, {t[0]}, 1, {t[1]}')
    p(f'v_mul_u32_u24 {t[0]}, 49152, {t[0]}')
    p(f'v_lshl_add_u32 {t[0]}, v2, 4, {t[0]}')
    p(f'v_add3_u32 {vg2}, {t[0]}, {sT[7]}, 0')
    p(f'v_add_u32 {vg2}, 512, {vg2}')
    sNL = sT[9]
    p(f's_mov_b32 {sNL}, {fhex(-math.log2(math.e))}')
    sGO = sT[10]
    def silu(gate, up, dst, tm):
        out = []
        for k in range(4): out.append(I(f'v_mul_f32 {tm[k]}, {sNL}, {gate[k]}'))
        for k in range(4): out.append(I(f'v_exp_f32 {tm[k]}, {tm[k]}'))
        for k in range(4): out.append(I(f'v_mul_f32 {gate[k]}, {gate[k]}, {up[k]}'))
        for k in range(4): out.append(I(f'v_add_f32 {tm[k]}, 1.0, {tm[k]}'))
        for k in range(4): out.append(I(f'v_rcp_f32 {tm[k]}, {tm[k]}'))
        for k in range(4): out.append(I(f'v_mul_f32 {gate[k]}, {gate[k]}, {tm[k]}'))
        out.append(I(f'v_cvt_pk_bf16_f32 {dst[0]}, {gate[0]}, {gate[1]}'))
        out.append(I(f'v_cvt_pk_bf16_f32 {dst[1]}, {gate[2]}, {gate[3]}'))
        return out
    def epilogue(r):
        A = ACC + 12 * (r & 1)
        rs, nmr = v(STT + 2 * r), v(STT + 2 * r + 1)
        out = []
        tm = [v(TM + k) for k in range(12)]
        for k in range(12): out.append(I(f'v_mul_f32 {tm[k]}, {nmr}, {v(CS+k)}'))
        d2 = [v(T2C + 4 * (r & 1) + k) for k in range(4)]
        for k in range(8): out.append(I(f'v_fma_f32 {tm[k]}, {v(A+k)}, {rs}, {tm[k]}'))
        for k in range(4): out.append(I(f'v_fma_f32 {d2[k]}, {v(A+8+k)}, {rs}, {tm[8+k]}'))
        gp = [v(GP + 2 * (r & 1) + k) for k in range(2)]
        out += silu(tm[0:4], tm[4:8], gp, tm[8:12])
        if r & 1:
            for k in range(4): out.append(I(f'v_permlane32_swap_b32 {v(T2C+k)}, {v(T2C+4+k)}'))
            for k in range(2): out.append(I(f'v_permlane16_swap_b32 {v(GP+k)}, {v(GP+2+k)}'))
            out.append(I(f's_mov_b32 {sGO}, {(r-1)*49152}'))
            out.append(I(f'buffer_store_dwordx4 {v(GP,4)}, {vg}, s[{S_WS}:{S_WS+3}], {sGO} offen'))
            g2 = [v(G2 + 2 * ((r >> 1) & 1) + k) for k in range(2)]
            out += silu([v(T2C + k) for k in range(4)], [v(T2C + 4 + k) for k in range(4)], g2, tm[8:12])
            if (r & 3) == 3:
                for k in range(2): out.append(I(f'v_permlane16_swap_b32 {v(G2+k)}, {v(G2+2+k)}'))
                out.append(I(f's_mov_b32 {sGO}, {(r-3)*49152}'))
                out.append(I(f'buffer_store_dwordx4 {v(G2,4)}, {vg2}, s[{S_WS}:{S_WS+3}], {sGO} offen'))
        return out
    def h_read(r, ks):
        so = (r % 5) * 20480
        base, off = (vlin0, so) if so < 61440 else (vlin1, so - 61440)
        return I(f'ds_read_b128 {v(HR+4*(ks%4),4)}, {base} offset:{LDS_H + off + ks*1024}')
    for r in range(8):
        p.wait_vm(f'h{r}')
        p('s_waitcnt lgkmcnt(0)')
        p('s_barrier')
        side = []
        if r >= 1 and r + 4 < 8: side += h_dma(r + 4)
        if r >= 1: side += epilogue(r - 1)
        p.extend([h_read(r, 0), h_read(r, 1), h_read(r, 2)])
        main = []; slots = []
        A = ACC + 12 * (r & 1)
        for ks in range(20):
            for T in range(3):
                c = '0' if ks == 0 else v(A + 4 * T, 4)
                main.append(I(f'v_mfma_f32_16x16x32_bf16 {v(A+4*T,4)}, {a(12*ks+4*T,4)}, {v(HR+4*(ks%4),4)}, {c}'))
                if T == 0 and ks + 3 < 20: main.append(h_read(r, ks + 3))
                if ks >= 2: slots += [len(main) - 1] * 2
        p.extend(weave(main, side, slots))
    p.extend(epilogue(7))
    p(f'{L}_exit:')
    p('s_endpgm')
    return p

def k_ffn2():
    p = Prog(); L = 'Lf2'
    LDS_ST, LDS_RED = 0, 122880
    va = ['v4', 'v5', 'v6', 'v7', 'v8']; vtr, vlin, vred, vrd, vout, vhr = 'v9', 'v10', 'v11', 'v12', 'v13', 'v14'
    t = ['v%d' % i for i in range(16, 32)]
    ACC, HRS, RD, GF = 32, 72, 88, 120
    prologue(p, L + '_exit')
    w80_addrs(p, va, vtr, t[:3])
    p(f's_mul_i32 {sT[2]}, {sW}, 30720')
    p(f'v_add_u32 {vtr}, {sT[2]}, {vtr}')
    p(f'v_lshlrev_b32 {vlin}, 4, v1')
    p(f's_mul_i32 {sT[3]}, {sW}, {384*1280}')
    sK = sT[3]
    def w_dma(ks):
        out = []
        for q in range(5):
            out += dma(va[q], S_W2, sK, (sT[2], LDS_ST + (ks % 6) * 5120 + q * 1024), f'w{ks}')
        out.append(I(f's_add_u32 {sK}, {sK}, 40960'))
        return out
    def w_tr(ks):
        return [I(f'ds_read_b64_tr_b16 {a(20*ks+4*ft+2*half,2)}, {vtr} offset:{LDS_ST + (ks%6)*5120 + half*1280 + ft*32}', 'wtr')
                for ft in range(5) for half in range(2)]
    for ks in range(6): p.extend(w_dma(ks))
    p(f's_lshl_b32 {sT[4]}, {sRB}, 2')
    p(f's_mul_i32 {sT[5]}, {sT[4]}, 49152')
    p(f's_mul_i32 {sT[6]}, {sW}, 12288')
    p(f's_add_u32 {sT[5]}, {sT[5]}, {sT[6]}')
    p(f's_add_u32 {sT[5]}, {sT[5]}, {WS_G}')
    sGA = sT[5]
    def g_loads(r):
        out = []
        for ks in range(12):
            out.append(I(f'buffer_load_dwordx4 {v(GF+48*(r&1)+4*ks,4)}, {vlin}, s[{S_WS}:{S_WS+3}], {sGA} offen offset:{1024*(ks%4)}'))
            if ks % 4 == 3: out.append(I(f's_add_u32 {sGA}, {sGA}, {4096 if ks < 11 else 49152 - 8192}'))
        return out
    p.extend(g_loads(0)); p.extend(g_loads(1))
    p(f'v_mul_u32_u24 {t[0]}, 0xcd, v1')
    p(f'v_lshrrev_b32 {t[0]}, 11, {t[0]}')
    p(f'v_mul_u32_u24 {t[1]}, 10, {t[0]}')
    p(f'v_sub_u32 {t[1]}, v1, {t[1]}')
    p(f's_lshl_b32 {sT[6]}, {sW}, 2')
    p(f'v_add_u32 {t[0]}, {sT[6]}, {t[0]}')
    p(f'v_and_b32 {t[0]}, 15, {t[0]}')
    p(f'v_lshlrev_b32 {t[2]}, 9, {t[1]}')
    p(f'v_lshl_add_u32 {t[2]}, {t[0]}, 4, {t[2]}')
    p(f'v_add_u32 {vrd}, {LDS_RED}, {t[2]}')
    p(f's_mul_i32 {sT[6]}, {sW}, 5120')
    p(f's_add_u32 {sT[6]}, {sT[6]}, {LDS_RED}')
    p(f'v_add_u32 {vred}, {sT[6]}, {vlin}')
    p(f's_lshl_b32 {sT[6]}, {sRB}, 6')
    p(f'v_add_u32 {t[2]}, {sT[6]}, {t[0]}')
    p(f'v_mul_u32_u24 {t[2]}, 1280, {t[2]}')
    p(f'v_lshl_add_u32 {t[2]}, {t[1]}, 4, {t[2]}')
    p(f's_mul_i32 {sT[6]}, {sJ}, 160')
    p(f'v_add_u32 {t[2]}, {sT[6]}, {t[2]}')
    p(f'v_mov_b32 {t[3]}, {OOB}')
    p('v_cmp_gt_u32 vcc, 40, v1')
    p(f'v_cndmask_b32 {vout}, {t[3]}, {t[2]}, vcc')
    p(f's_mul_i32 {sT[6]}, {sT[4]}, 20480')
    p(f's_mul_i32 {sT[7]}, {sJ}, 2560')
    p(f's_add_u32 {sT[6]}, {sT[6]}, {sT[7]}')
    p(f's_add_u32 {sT[6]}, {sT[6]}, {WS_H}')
    p(f'v_lshlrev_b32 {t[2]}, 8, {t[1]}')
    p(f'v_lshl_add_u32 {t[2]}, {t[0]}, 4, {t[2]}')
    p(f'v_add_u32 {t[2]}, {sT[6]}, {t[2]}')
    p(f'v_cndmask_b32 {vhr}, {t[3]}, {t[2]}, vcc')
    for r in range(4):
        p(f's_mov_b32 {sT[6]}, {20480*r}')
        p(f'buffer_load_dwordx4 {v(HRS+4*r,4)}, {vhr}, s[{S_WS}:{S_WS+3}], {sT[6]} offen')
    for ks in range(12):
        p.wait_vm(f'w{ks}')
        p.extend(w_tr(ks))
        if ks + 6 < 12:
            p.wait_ds('wtr')
            p.extend(w_dma(ks + 6))
    sO = sT[8]
    def finish(r):
        out = []
        for src in range(4):
            for k in range(2):
                out.append(I(f'ds_read_b128 {v(RD+8*src+4*k,4)}, {vrd} offset:{(r&1)*20480 + src*5120 + 256*k}'))
        for k in range(8): out.append(I(f'v_add_f32 {v(RD+k)}, {v(RD+k)}, {v(RD+8+k)}'))
        for k in range(8): out.append(I(f'v_add_f32 {v(RD+16+k)}, {v(RD+16+k)}, {v(RD+24+k)}'))
        for k in range(8): out.append(I(f'v_add_f32 {v(RD+k)}, {v(RD+k)}, {v(RD+16+k)}'))
        for k in range(8): out.append(I(f'v_dot2_f32_bf16 {v(RD+8+k)}, {v(HRS+4*r+(k>>1))}, {(sSELLO,sSELHI)[k&1]}, {v(RD+k)}'))
        for k in range(4): out.append(I(f'v_cvt_pk_bf16_f32 {v(RD+k)}, {v(RD+8+2*k)}, {v(RD+8+2*k+1)}'))
        out.append(I(f's_mov_b32 {sO}, {r*16*1280}'))
        out.append(I(f'buffer_store_dwordx4 {v(RD,4)}, {vout}, s[{S_OUT}:{S_OUT+3}], {sO} offen'))
        return out
    for r in range(4):
        A = ACC + 20 * (r & 1)
        main = []; slots = []
        for ks in range(12):
            for ft in range(5):
                c = '0' if ks == 0 else v(A + 4 * ft, 4)
                main.append(I(f'v_mfma_f32_16x16x32_bf16 {v(A+4*ft,4)}, {a(20*ks+4*ft,4)}, {v(GF+48*(r&1)+4*ks,4)}, {c}'))
                slots += [len(main) - 1] * 2
        side = finish(r - 1) if r >= 1 else []
        p.extend(weave(main, side, slots))
        if r + 2 < 4: p.extend(g_loads(r + 2))
        for ft in range(5):
            p(f'ds_write_b128 {vred}, {v(A+4*ft,4)} offset:{(r&1)*20480 + ft*1024}')
        p('s_waitcnt lgkmcnt(0)')
        p('s_barrier')
    p.extend(finish(3))
    p(f'{L}_exit:')
    p('s_endpgm')
    return p

def build(extra_launches=0):
    ks = [('qkv_kernel', k_qkv(), 256, 256, 129280), ('att_kernel', k_att(), 256, 256, 32768),
          ('oproj_kernel', k_oproj(), 256, 256, 102400), ('ffn1_kernel', k_ffn1(), 512, 256, 151552),
          ('ffn2_kernel', k_ffn2(), 512, 256, 163840)]
    head = HEADER
    for n, _, _, _, lds in ks:
        head += f'; @launch kernel={n} grid=(256,1,1) block=(256,1,1) lds={lds}\n'
    for _ in range(extra_launches):
        head += '; @launch kernel=nop_kernel grid=(256,1,1) block=(256,1,1) lds=0\n'
    text = head + '.amdgcn_target "amdgcn-amd-amdhsa--gfx950"\n.text\n'
    kds = ''
    for n, pr, vg, acc, _ in ks:
        tx, kd, _ = kernel_text(n, pr, vg, acc)
        text += tx; kds += '.p2align 6\n' + kd
    if extra_launches:
        pr = Prog(); pr('s_endpgm')
        tx, kd, _ = kernel_text('nop_kernel', pr, 8, 8)
        text += tx; kds += '.p2align 6\n' + kd
    text += '.section .rodata,"a"\n' + kds
    return text

if __name__ == '__main__':
    out = sys.argv[1]
    extra = int(sys.argv[2]) if len(sys.argv) > 2 else 0
    open(out, 'w').write(build(extra))
```
